```python
import torch

def _softmax(x, axis=-1):
    return torch.softmax(x, dim=axis)
def _gelu(x):
    return torch.nn.functional.gelu(x, approximate="tanh")
def _silu(x):
    return torch.nn.functional.silu(x)
def _sigmoid(x):
    return torch.sigmoid(x)
def _layernorm(x, axis=-1, eps=1e-5):
    m = x.mean(dim=axis, keepdim=True)
    v = x.var(dim=axis, keepdim=True, unbiased=False)
    return (x - m) / torch.sqrt(v + eps)
def _scatter_add(tgt, idx, src, axis=0):
    return tgt.clone().index_add_(axis, idx, src)
def _segment_sum(src, seg, n):
    out = torch.zeros((n,) + src.shape[1:], dtype=src.dtype)
    return out.index_add_(0, seg, src)
def _pad(x, pw):
    flat = tuple(v for pair in reversed(pw) for v in pair)
    return torch.nn.functional.pad(x, flat)

kernel_name = 'standalone__dense_activation_silu__prompt'

def setup_inputs():

    _w = (lambda a: (lambda t: t.to(torch.bfloat16) if t.is_floating_point() else t)(torch.as_tensor(a)))
    B, S, D, F = 1, 2048, 640, 1728
    return {
        "x": _w((lambda *s: torch.randn(*s, dtype=torch.bfloat16) * 0.1)(B, S, D)),
        "w1": _w((lambda *s: torch.randn(*s, dtype=torch.bfloat16) * 3.2)(D, F) * (D ** -0.5)),
        "w2": _w((lambda *s: torch.randn(*s, dtype=torch.bfloat16) * 3.2)(F, D) * (F ** -0.5)),
    }

def reference(x, w1, w2):
    h = torch.einsum("bsd,df->bsf", x, w1)
    h = _silu(h)
    out = torch.einsum("bsf,fd->bsd", h, w2)
    return out
```

```python
import sys

OUT = sys.argv[1] if len(sys.argv) > 1 else "standalone__dense_activation_silu__prompt.s"
D2 = 6

L = []
def e(s): L.append("    " + s)
def lab(s): L.append(s + ":")
def c(s): L.append("    ; " + s)

def vr(b, n): return f"v[{b}:{b+n-1}]"

HEADER = """; Kernarg layout for this problem (48 bytes, ptrs only, base s[0:1]):
;   offset   0: d_in[0] x  shape=(1, 2048, 640) dtype=bfloat16 strides=(2621440, 1280, 2) contiguous=True
;   offset   8: d_in[1] w1  shape=(640, 1728) dtype=bfloat16 strides=(3456, 2) contiguous=True
;   offset  16: d_in[2] w2  shape=(1728, 640) dtype=bfloat16 strides=(1280, 2) contiguous=True
;   offset  24: d_out     shape=(1, 2048, 640) dtype=bfloat16 (2 bytes/elem)
;   offset  32: d_debug   256 bytes
;   offset  40: d_ws      268435456 bytes workspace
; launch 1: h = silu(x @ w1) written to d_ws in MFMA fragment order; launch 2: out = h @ w2
; @launch kernel=ffn1_kernel grid=(224,1,1) block=(256,1,1) lds=131072
; @launch kernel=ffn2_kernel grid=(256,1,1) block=(256,1,1) lds=%d
.amdgcn_target "amdgcn-amd-amdhsa--gfx950"
.text
""" % (4 * D2 * 5120)

def gen_k1():
    L.append(".globl ffn1_kernel")
    L.append(".p2align 8")
    L.append(".type ffn1_kernel,@function")
    lab("ffn1_kernel")
    e("s_cmp_ge_u32 s2, 224")
    e("s_cbranch_scc1 L1_end")
    e("s_load_dwordx4 s[4:7], s[0:1], 0")
    e("s_load_dwordx2 s[8:9], s[0:1], 40")
    e("v_and_b32 v1, 63, v0")
    e("v_lshrrev_b32 v2, 6, v0")
    e("s_nop 0")
    e("v_readfirstlane_b32 s24, v2")
    e("s_and_b32 s31, s2, 7")
    e("s_lshr_b32 s33, s2, 3")
    e("s_and_b32 s34, s33, 1")
    e("s_lshr_b32 s35, s33, 1")
    e("s_lshl_b32 s25, s31, 8")
    e("s_lshl_b32 s34, s34, 7")
    e("s_add_u32 s25, s25, s34")
    e("s_lshl_b32 s26, s35, 7")
    e("s_and_b32 s37, s24, 1")
    e("s_lshr_b32 s38, s24, 1")
    e("s_lshl_b32 s27, s24, 12")
    e("s_add_u32 s28, s27, 0x10000")
    e("s_lshl_b32 s36, s24, 5")
    e("s_add_u32 s36, s36, s25")
    e("v_lshrrev_b32 v2, 3, v1")
    e("v_and_b32 v3, 7, v1")
    e("v_lshrrev_b32 v4, 4, v1")
    for ii in range(4):
        e(f"v_add_u32 v5, {4*(ii&1)}, v4")
        e("v_xor_b32 v5, v3, v5")
        e("v_lshlrev_b32 v5, 4, v5")
        e(f"v_add_u32 v6, {8*ii}, v2")
        e("v_add_u32 v6, s36, v6")
        e("v_mul_u32_u24 v6, 1280, v6")
        e(f"v_add_u32 v{10+ii}, v6, v5")
    e("v_and_b32 v5, 15, v1")
    e("v_lshlrev_b32 v6, 2, v4")
    e("v_xor_b32 v5, v5, v6")
    e("v_lshlrev_b32 v5, 4, v5")
    e("s_lshl_b32 s39, s26, 1")
    e("v_add_u32 v5, s39, v5")
    e("s_lshl_b32 s39, s24, 4")
    for ii in range(4):
        e(f"v_add_u32 v6, {4*ii}, v4")
        e("v_add_u32 v6, s39, v6")
        e("v_mul_u32_u24 v6, 3456, v6")
        e(f"v_add_u32 v{14+ii}, v6, v5")
    e("v_and_b32 v5, 31, v1")
    e("v_lshrrev_b32 v6, 1, v5")
    e("v_and_b32 v6, 7, v6")
    e("v_lshrrev_b32 v7, 5, v1")
    e("s_lshl_b32 s39, s37, 6")
    e("v_add_u32 v5, s39, v5")
    e("v_lshlrev_b32 v5, 7, v5")
    for j in range(4):
        e(f"v_add_u32 v8, {2*j}, v7")
        e("v_xor_b32 v8, v8, v6")
        e("v_lshlrev_b32 v8, 4, v8")
        e(f"v_add_u32 v{18+j}, v5, v8")
    e("v_and_b32 v5, 15, v1")
    e("v_lshrrev_b32 v6, 2, v5")
    e("v_and_b32 v5, 3, v5")
    e("v_lshrrev_b32 v7, 1, v4")
    e("v_lshlrev_b32 v7, 3, v7")
    e("v_add_u32 v7, v7, v6")
    e("v_lshlrev_b32 v7, 8, v7")
    e("v_and_b32 v8, 1, v5")
    e("v_lshlrev_b32 v8, 3, v8")
    e("v_add_u32 v7, v7, v8")
    e("v_add_u32 v7, 0x10000, v7")
    e("v_and_b32 v8, 1, v4")
    e("v_lshlrev_b32 v8, 1, v8")
    e("v_lshrrev_b32 v9, 1, v5")
    e("v_add_u32 v8, v8, v9")
    e("s_lshl_b32 s39, s38, 3")
    e("v_add_u32 v8, s39, v8")
    e("v_lshlrev_b32 v9, 2, v6")
    for fi in range(2):
        e(f"v_add_u32 v2, {4*fi}, v8")
        e("v_xor_b32 v2, v2, v9")
        e("v_lshlrev_b32 v2, 4, v2")
        e(f"v_add_u32 v{22+fi}, v7, v2")
    e("v_and_b32 v5, 1, v4")
    e("v_lshlrev_b32 v5, 10, v5")
    e("v_and_b32 v6, 15, v1")
    e("v_lshlrev_b32 v6, 4, v6")
    e("v_add_u32 v5, v5, v6")
    e("v_lshrrev_b32 v6, 5, v1")
    e("v_lshlrev_b32 v6, 8, v6")
    e("v_add_u32 v24, v5, v6")
    e("s_lshl_b32 s39, s37, 6")
    e("s_add_u32 s39, s39, s25")
    e("s_lshr_b32 s39, s39, 6")
    e("s_mul_i32 s39, s39, 54")
    e("s_lshl_b32 s40, s38, 6")
    e("s_add_u32 s40, s40, s26")
    e("s_lshr_b32 s41, s40, 5")
    e("s_add_u32 s39, s39, s41")
    e("s_lshl_b32 s32, s39, 12")
    e("s_waitcnt lgkmcnt(0)")
    e("s_mov_b32 s12, s4")
    e("s_and_b32 s13, s5, 0xffff")
    e("s_mov_b32 s14, 2621440")
    e("s_mov_b32 s15, 0x20000")
    e("s_mov_b32 s16, s6")
    e("s_and_b32 s17, s7, 0xffff")
    e("s_mov_b32 s18, 2211840")
    e("s_mov_b32 s19, 0x20000")
    e("s_mov_b32 s20, s8")
    e("s_and_b32 s21, s9, 0xffff")
    e("s_mov_b32 s22, 7077888")
    e("s_mov_b32 s23, 0x20000")

    def dma_list(stage):
        slot = stage & 3
        ops = []
        pre = [f"s_mov_b32 s29, {stage*128}", f"s_mov_b32 s30, {stage*221184}"]
        for ii in range(4):
            ops.append([f"s_add_u32 m0, s27, {slot*16384+ii*1024}", "s_nop 0",
                        f"buffer_load_dwordx4 v{10+ii}, s[12:15], s29 offen lds"])
        for ii in range(4):
            ops.append([f"s_add_u32 m0, s28, {slot*16384+ii*1024}", "s_nop 0",
                        f"buffer_load_dwordx4 v{14+ii}, s[16:19], s30 offen lds"])
        ops[0] = pre + ops[0]
        return ops

    def X(p, mi): return 32 + 16*p + 4*mi
    def W(p, fi): return 32 + 16*p + 8 + 4*fi
    def ACC(fi, mi): return 64 + 16*(2*fi+mi)

    def reads(u):
        stage, j, p = u >> 2, u & 3, u & 1
        slot = stage & 3
        for mi in range(2):
            e(f"ds_read_b128 {vr(X(p,mi),4)}, v{18+j} offset:{slot*16384+mi*4096}")
        for fi in range(2):
            for t in range(2):
                e(f"ds_read_b64_tr_b16 {vr(W(p,fi)+2*t,2)}, v{22+fi} offset:{slot*16384+j*4096+t*1024}")

    def mfmas(u, inter):
        p = u & 1
        k = 0
        for fi in range(2):
            for mi in range(2):
                cc = "0" if u == 0 else vr(ACC(fi,mi),16)
                e(f"v_mfma_f32_32x32x16_bf16 {vr(ACC(fi,mi),16)}, {vr(W(p,fi),4)}, {vr(X(p,mi),4)}, {cc}")
                for op in inter[2*k:2*k+2]:
                    for s in op: e(s)
                k += 1

    for st in range(3):
        for op in dma_list(st):
            for s in op: e(s)
    e("s_waitcnt vmcnt(16)")
    e("s_barrier")
    reads(0)
    for op in dma_list(3):
        for s in op: e(s)
    NS = 10
    for u in range(4*NS):
        stage, j = u >> 2, u & 3
        inter = []
        if u == 4*NS-1:
            e("s_waitcnt lgkmcnt(0)")
        elif j == 3:
            nxt = stage + 1
            outstanding_after = min(NS-1, stage+3) - nxt
            e(f"s_waitcnt vmcnt({8*outstanding_after}) lgkmcnt(0)")
            e("s_barrier")
            reads(u+1)
            if stage + 4 < NS:
                inter = dma_list(stage+4)
        else:
            reads(u+1)
            e("s_waitcnt lgkmcnt(6)")
        mfmas(u, inter)
    e("s_cmp_ge_u32 s40, 1728")
    e("s_cbranch_scc1 L1_end")
    e("s_nop 7")
    e("s_nop 7")
    for fi in range(2):
        e(f"s_add_u32 s33, s32, {fi*4096}")
        for mi in range(2):
            a = ACC(fi, mi)
            dst = 32 + 8*(2*fi+mi)
            for pr in range(8):
                t0 = 2 + 4*(pr & 1)
                e(f"v_cvt_pk_bf16_f32 v{t0}, v{a+2*pr}, v{a+2*pr+1}")
                e(f"v_and_b32 v{t0+1}, 0xffff0000, v{t0}")
                e(f"v_lshlrev_b32 v{t0}, 16, v{t0}")
                e(f"v_mul_f32 v{t0+2}, 0xbfb8aa3b, v{t0}")
                e(f"v_mul_f32 v{t0+3}, 0xbfb8aa3b, v{t0+1}")
                e(f"v_exp_f32 v{t0+2}, v{t0+2}")
                e(f"v_exp_f32 v{t0+3}, v{t0+3}")
                e(f"v_add_f32 v{t0+2}, 1.0, v{t0+2}")
                e(f"v_add_f32 v{t0+3}, 1.0, v{t0+3}")
                e(f"v_rcp_f32 v{t0+2}, v{t0+2}")
                e(f"v_rcp_f32 v{t0+3}, v{t0+3}")
                e(f"v_mul_f32 v{t0}, v{t0}, v{t0+2}")
                e(f"v_mul_f32 v{t0+1}, v{t0+1}, v{t0+3}")
                e(f"v_cvt_pk_bf16_f32 v{dst+pr}, v{t0}, v{t0+1}")
            for piece in range(2):
                e(f"buffer_store_dwordx4 {vr(dst+4*piece,4)}, v24, s[20:23], s33 offen offset:{mi*2048+piece*512}")
    lab("L1_end")
    e("s_endpgm")

def gen_k2():
    D = D2
    NST = 14
    L.append(".globl ffn2_kernel")
    L.append(".p2align 8")
    L.append(".type ffn2_kernel,@function")
    lab("ffn2_kernel")
    e("s_cmp_ge_u32 s2, 256")
    e("s_cbranch_scc1 L2_end")
    e("s_load_dwordx4 s[4:7], s[0:1], 16")
    e("s_load_dwordx2 s[8:9], s[0:1], 40")
    e("v_and_b32 v1, 63, v0")
    e("v_lshrrev_b32 v2, 6, v0")
    e("s_nop 0")
    e("v_readfirstlane_b32 s24, v2")
    e("s_and_b32 s31, s2, 7")
    e("s_lshr_b32 s33, s2, 3")
    e("s_and_b32 s34, s33, 3")
    e("s_lshr_b32 s35, s33, 2")
    e("s_lshl_b32 s25, s31, 8")
    e("s_lshl_b32 s34, s34, 6")
    e("s_add_u32 s25, s25, s34")
    e("s_mul_i32 s26, s35, 80")
    e(f"s_mul_i32 s27, s24, {D*5120}")
    e("s_lshl_b32 s36, s24, 12")
    e("s_mul_i32 s37, s24, 40960")
    e("v_lshlrev_b32 v10, 4, v1")
    e("s_lshl_b32 s39, s26, 1")
    for i5 in range(5):
        e(f"v_add_u32 v2, {64*i5}, v1")
        e("v_mul_u32_u24 v3, 205, v2")
        e("v_lshrrev_b32 v3, 11, v3")
        e("v_mul_u32_u24 v4, 10, v3")
        e("v_sub_u32 v4, v2, v4")
        e("v_mul_u32_u24 v3, 1280, v3")
        e("v_lshlrev_b32 v4, 4, v4")
        e("v_add_u32 v3, v3, v4")
        e(f"v_add_u32 v{11+i5}, s39, v3")
    e("v_lshrrev_b32 v2, 4, v1")
    e("v_and_b32 v3, 15, v1")
    e("v_lshrrev_b32 v4, 2, v3")
    e("v_and_b32 v3, 3, v3")
    e("v_lshrrev_b32 v5, 1, v2")
    e("v_lshlrev_b32 v5, 4, v5")
    e("v_and_b32 v6, 1, v2")
    e("v_lshlrev_b32 v6, 2, v6")
    e("v_add_u32 v5, v5, v6")
    e("v_add_u32 v5, v5, v4")
    e("v_mul_u32_u24 v5, 160, v5")
    e("v_lshlrev_b32 v3, 3, v3")
    e("v_add_u32 v5, v5, v3")
    e("v_add_u32 v16, s27, v5")
    e("v_and_b32 v3, 15, v1")
    e("v_mul_u32_u24 v3, 320, v3")
    e("v_lshlrev_b32 v4, 4, v2")
    e("v_add_u32 v3, v3, v4")
    e("v_add_u32 v17, s27, v3")
    e("v_lshrrev_b32 v2, 2, v0")
    e("v_and_b32 v3, 3, v0")
    e("v_mul_u32_u24 v4, 320, v2")
    e("v_mul_u32_u24 v5, 80, v3")
    e("v_add_u32 v18, v4, v5")
    e("v_add_u32 v2, s25, v2")
    e("v_mul_u32_u24 v2, 1280, v2")
    e("v_mul_u32_u24 v5, 40, v3")
    e("v_add_u32 v2, v2, v5")
    e("v_add_u32 v19, s39, v2")
    e("s_lshr_b32 s39, s25, 6")
    e("s_mul_i32 s39, s39, 221184")
    e("s_waitcnt lgkmcnt(0)")
    e("s_add_u32 s12, s8, s39")
    e("s_addc_u32 s13, s9, 0")
    e("s_and_b32 s13, s13, 0xffff")
    e("s_mov_b32 s14, 221184")
    e("s_mov_b32 s15, 0x20000")
    e("s_mov_b32 s16, s4")
    e("s_and_b32 s17, s5, 0xffff")
    e("s_mov_b32 s18, 2211840")
    e("s_mov_b32 s19, 0x20000")
    e("s_mov_b32 s20, s6")
    e("s_and_b32 s21, s7, 0xffff")
    e("s_mov_b32 s22, 2621440")
    e("s_mov_b32 s23, 0x20000")

    AB = 32
    WB = AB + 16*D
    CB = WB + 40
    assert CB + 80 <= 256, CB
    def A(s, mb): return AB + 16*s + 4*mb
    def W(p, nb): return WB + 20*p + 4*nb
    def ACC(nb, mb): return CB + 4*(4*nb+mb)

    def loads(i):
        ops = []
        pre = [f"s_add_u32 s28, s36, {i*16384}", f"s_add_u32 s29, s37, {i*163840}"]
        for mb in range(4):
            ops.append([f"buffer_load_dwordx4 {vr(A(i%D,mb),4)}, v10, s[12:15], s28 offen offset:{mb*1024}"])
        for i5 in range(5):
            ops.append([f"s_add_u32 m0, s27, {(i%D)*5120+i5*1024}", "s_nop 0",
                        f"buffer_load_dwordx4 v{11+i5}, s[16:19], s29 offen lds"])
        ops[0] = pre + ops[0]
        return ops

    def tr(i):
        slot, p = i % D, i & 1
        for nb in range(5):
            for t in range(2):
                e(f"ds_read_b64_tr_b16 {vr(W(p,nb)+2*t,2)}, v16 offset:{slot*5120+t*1280+nb*32}")

    for i in range(D-1):
        for op in loads(i):
            for s in op: e(s)
    e(f"s_waitcnt vmcnt({9*(D-2)})")
    tr(0)
    for i in range(NST):
        if i + 1 < NST:
            last_issued = min(i + D - 2, NST-1)
            e(f"s_waitcnt vmcnt({9*(last_issued-(i+1))})")
            tr(i+1)
            e("s_waitcnt lgkmcnt(10)")
        else:
            e("s_waitcnt lgkmcnt(0)")
        inter = loads(i+D-1) if i + D - 1 < NST else []
        k = 0
        p = i & 1
        for nb in range(5):
            for mb in range(4):
                cc = "0" if i == 0 else vr(ACC(nb,mb),4)
                e(f"v_mfma_f32_16x16x32_bf16 {vr(ACC(nb,mb),4)}, {vr(W(p,nb),4)}, {vr(A(i%D,mb),4)}, {cc}")
                if k % 2 == 1 and inter:
                    for s in inter.pop(0): e(s)
                k += 1
        assert not inter
    e("s_nop 7")
    e("s_nop 3")
    for nb in range(5):
        for mb in range(4):
            e(f"ds_write_b128 v17, {vr(ACC(nb,mb),4)} offset:{mb*5120+nb*64}")
    e("s_waitcnt lgkmcnt(0)")
    e("s_barrier")
    e(f"v_add_u32 v20, {2*D*5120}, v18")
    for p in range(4):
        for j in range(5):
            e(f"ds_read_b128 {vr(32+20*p+4*j,4)}, v{18 if p < 2 else 20} offset:{(p&1)*D*5120+j*16}")
    e("s_waitcnt lgkmcnt(0)")
    for k in range(20):
        e(f"v_add_f32 v{32+k}, v{32+k}, v{52+k}")
        e(f"v_add_f32 v{72+k}, v{72+k}, v{92+k}")
    for k in range(20):
        e(f"v_add_f32 v{32+k}, v{32+k}, v{72+k}")
    for k in range(10):
        e(f"v_cvt_pk_bf16_f32 v{112+k}, v{32+2*k}, v{33+2*k}")
    for j in range(5):
        e(f"buffer_store_dwordx2 {vr(112+2*j,2)}, v19, s[20:23], 0 offen offset:{8*j}")
    lab("L2_end")
    e("s_endpgm")

gen_k1()
gen_k2()

TAIL = """.section .rodata,"a"
.p2align 6
.amdhsa_kernel ffn1_kernel
  .amdhsa_next_free_vgpr 128
  .amdhsa_next_free_sgpr 48
  .amdhsa_accum_offset 128
  .amdhsa_group_segment_fixed_size 0
  .amdhsa_kernarg_size 48
  .amdhsa_user_sgpr_count 2
  .amdhsa_user_sgpr_kernarg_segment_ptr 1
  .amdhsa_system_sgpr_workgroup_id_x 1
.end_amdhsa_kernel
.p2align 6
.amdhsa_kernel ffn2_kernel
  .amdhsa_next_free_vgpr 256
  .amdhsa_next_free_sgpr 48
  .amdhsa_accum_offset 256
  .amdhsa_group_segment_fixed_size 0
  .amdhsa_kernarg_size 48
  .amdhsa_user_sgpr_count 2
  .amdhsa_user_sgpr_kernarg_segment_ptr 1
  .amdhsa_system_sgpr_workgroup_id_x 1
.end_amdhsa_kernel
"""
open(OUT, "w").write(HEADER + "\n".join(L) + "\n" + TAIL)
print("wrote", OUT, len(L), "lines")
```

```python
import sys

OUT = sys.argv[1] if len(sys.argv) > 1 else "standalone__dense_activation_silu__prompt.s"
D2 = 6
import os
DIAG = int(os.environ.get("DIAG", "0"))
NSTAMP = [0]
def stamp():
    if not DIAG: return
    i = NSTAMP[0]; NSTAMP[0] += 1
    e(f"s_memtime s[{50+2*i}:{51+2*i}]")
def dump_stamps(wg, slot):
    if not DIAG: return
    n = NSTAMP[0]
    e("s_waitcnt lgkmcnt(0)")
    e(f"s_cmp_lg_u32 s2, {wg}")
    e(f"s_cbranch_scc1 Ldump_{slot}")
    e("s_cmp_lg_u32 s24, 0")
    e(f"s_cbranch_scc1 Ldump_{slot}")
    e("s_load_dwordx2 s[44:45], s[0:1], 32")
    e("s_waitcnt lgkmcnt(0)")
    e("s_and_b32 s45, s45, 0xffff")
    e("s_mov_b32 s46, 256")
    e("s_mov_b32 s47, 0x20000")
    e("v_mov_b32 v2, 0")
    for i in range(n):
        e(f"s_sub_u32 s48, s{50+2*i}, s50")
        e("v_mov_b32 v3, s48")
        e(f"buffer_store_dword v3, v2, s[44:47], 0 offen offset:{4*i+(slot-1)*128}")
    lab(f"Ldump_{slot}")
    NSTAMP[0] = 0


L = []
def e(s): L.append("    " + s)
def lab(s): L.append(s + ":")
def c(s): L.append("    ; " + s)

def vr(b, n): return f"v[{b}:{b+n-1}]"

HEADER = """; Kernarg layout for this problem (48 bytes, ptrs only, base s[0:1]):
; @launch kernel=ffn1_kernel grid=(256,1,1) block=(256,1,1) lds=131072
; @launch kernel=ffn2_kernel grid=(256,1,1) block=(256,1,1) lds=81920
.amdgcn_target "amdgcn-amd-amdhsa--gfx950"
.text
"""

def gen_k1():
    L.append(".globl ffn1_kernel")
    L.append(".p2align 8")
    L.append(".type ffn1_kernel,@function")
    lab("ffn1_kernel")
    e("s_cmp_ge_u32 s2, 224")
    e("s_cbranch_scc1 L1_helper")
    stamp()
    e("s_load_dwordx4 s[4:7], s[0:1], 0")
    e("s_load_dwordx2 s[8:9], s[0:1], 40")
    e("v_and_b32 v1, 63, v0")
    e("v_lshrrev_b32 v2, 6, v0")
    e("s_nop 0")
    e("v_readfirstlane_b32 s24, v2")
    e("s_and_b32 s31, s2, 7")
    e("s_lshr_b32 s33, s2, 3")
    e("s_and_b32 s34, s33, 1")
    e("s_lshr_b32 s35, s33, 1")
    e("s_lshl_b32 s25, s31, 8")
    e("s_lshl_b32 s34, s34, 7")
    e("s_add_u32 s25, s25, s34")
    e("s_lshl_b32 s26, s35, 7")
    e("s_and_b32 s37, s24, 1")
    e("s_lshr_b32 s38, s24, 1")
    e("s_lshl_b32 s27, s24, 12")
    e("s_add_u32 s28, s27, 0x10000")
    e("s_lshl_b32 s36, s24, 5")
    e("s_add_u32 s36, s36, s25")
    e("v_lshrrev_b32 v2, 3, v1")
    e("v_and_b32 v3, 7, v1")
    e("v_lshrrev_b32 v4, 4, v1")
    for ii in range(4):
        e(f"v_add_u32 v5, {4*(ii&1)}, v4")
        e("v_xor_b32 v5, v3, v5")
        e("v_lshlrev_b32 v5, 4, v5")
        e(f"v_add_u32 v6, {8*ii}, v2")
        e("v_add_u32 v6, s36, v6")
        e("v_mul_u32_u24 v6, 1280, v6")
        e(f"v_add_u32 v{10+ii}, v6, v5")
    e("v_and_b32 v5, 15, v1")
    e("v_lshlrev_b32 v6, 2, v4")
    e("v_xor_b32 v5, v5, v6")
    e("v_lshlrev_b32 v5, 4, v5")
    e("s_lshl_b32 s39, s26, 1")
    e("v_add_u32 v5, s39, v5")
    e("s_lshl_b32 s39, s24, 4")
    for ii in range(4):
        e(f"v_add_u32 v6, {4*ii}, v4")
        e("v_add_u32 v6, s39, v6")
        e("v_mul_u32_u24 v6, 3456, v6")
        e(f"v_add_u32 v{14+ii}, v6, v5")
    e("v_and_b32 v5, 31, v1")
    e("v_lshrrev_b32 v6, 1, v5")
    e("v_and_b32 v6, 7, v6")
    e("v_lshrrev_b32 v7, 5, v1")
    e("s_lshl_b32 s39, s37, 6")
    e("v_add_u32 v5, s39, v5")
    e("v_lshlrev_b32 v5, 7, v5")
    for j in range(4):
        e(f"v_add_u32 v8, {2*j}, v7")
        e("v_xor_b32 v8, v8, v6")
        e("v_lshlrev_b32 v8, 4, v8")
        e(f"v_add_u32 v{18+j}, v5, v8")
    e("v_and_b32 v5, 15, v1")
    e("v_lshrrev_b32 v6, 2, v5")
    e("v_and_b32 v5, 3, v5")
    e("v_lshrrev_b32 v7, 1, v4")
    e("v_lshlrev_b32 v7, 3, v7")
    e("v_add_u32 v7, v7, v6")
    e("v_lshlrev_b32 v7, 8, v7")
    e("v_and_b32 v8, 1, v5")
    e("v_lshlrev_b32 v8, 3, v8")
    e("v_add_u32 v7, v7, v8")
    e("v_add_u32 v7, 0x10000, v7")
    e("v_and_b32 v8, 1, v4")
    e("v_lshlrev_b32 v8, 1, v8")
    e("v_lshrrev_b32 v9, 1, v5")
    e("v_add_u32 v8, v8, v9")
    e("s_lshl_b32 s39, s38, 3")
    e("v_add_u32 v8, s39, v8")
    e("v_lshlrev_b32 v9, 2, v6")
    for fi in range(2):
        e(f"v_add_u32 v2, {4*fi}, v8")
        e("v_xor_b32 v2, v2, v9")
        e("v_lshlrev_b32 v2, 4, v2")
        e(f"v_add_u32 v{22+fi}, v7, v2")
    e("v_and_b32 v5, 1, v4")
    e("v_lshlrev_b32 v5, 10, v5")
    e("v_and_b32 v6, 15, v1")
    e("v_lshlrev_b32 v6, 4, v6")
    e("v_add_u32 v5, v5, v6")
    e("v_lshrrev_b32 v6, 5, v1")
    e("v_lshlrev_b32 v6, 8, v6")
    e("v_add_u32 v24, v5, v6")
    e("s_lshl_b32 s39, s37, 6")
    e("s_add_u32 s39, s39, s25")
    e("s_lshr_b32 s39, s39, 6")
    e("s_mul_i32 s39, s39, 54")
    e("s_lshl_b32 s40, s38, 6")
    e("s_add_u32 s40, s40, s26")
    e("s_lshr_b32 s41, s40, 5")
    e("s_add_u32 s39, s39, s41")
    e("s_lshl_b32 s32, s39, 12")
    e("s_waitcnt lgkmcnt(0)")
    e("s_mov_b32 s12, s4")
    e("s_and_b32 s13, s5, 0xffff")
    e("s_mov_b32 s14, 2621440")
    e("s_mov_b32 s15, 0x20000")
    e("s_mov_b32 s16, s6")
    e("s_and_b32 s17, s7, 0xffff")
    e("s_mov_b32 s18, 2211840")
    e("s_mov_b32 s19, 0x20000")
    e("s_mov_b32 s20, s8")
    e("s_and_b32 s21, s9, 0xffff")
    e("s_mov_b32 s22, 7077888")
    e("s_mov_b32 s23, 0x20000")

    def dma_list(stage):
        slot = stage & 3
        ops = []
        pre = [f"s_mov_b32 s29, {stage*128}", f"s_mov_b32 s30, {stage*221184}"]
        for ii in range(4):
            ops.append([f"s_add_u32 m0, s27, {slot*16384+ii*1024}", "s_nop 0",
                        f"buffer_load_dwordx4 v{10+ii}, s[12:15], s29 offen lds"])
        for ii in range(4):
            ops.append([f"s_add_u32 m0, s28, {slot*16384+ii*1024}", "s_nop 0",
                        f"buffer_load_dwordx4 v{14+ii}, s[16:19], s30 offen lds"])
        ops[0] = pre + ops[0]
        return ops

    def X(p, mi): return 32 + 16*p + 4*mi
    def W(p, fi): return 32 + 16*p + 8 + 4*fi
    def ACC(fi, mi): return 64 + 16*(2*fi+mi)

    def reads(u):
        stage, j, p = u >> 2, u & 3, u & 1
        slot = stage & 3
        for mi in range(2):
            e(f"ds_read_b128 {vr(X(p,mi),4)}, v{18+j} offset:{slot*16384+mi*4096}")
        for fi in range(2):
            for t in range(2):
                e(f"ds_read_b64_tr_b16 {vr(W(p,fi)+2*t,2)}, v{22+fi} offset:{slot*16384+j*4096+t*1024}")

    def mfmas(u, inter):
        p = u & 1
        k = 0
        for fi in range(2):
            for mi in range(2):
                cc = "0" if u == 0 else vr(ACC(fi,mi),16)
                e(f"v_mfma_f32_32x32x16_bf16 {vr(ACC(fi,mi),16)}, {vr(W(p,fi),4)}, {vr(X(p,mi),4)}, {cc}")
                for op in inter[k:k+1]:
                    for s in op: e(s)
                k += 1

    for st in range(3):
        for op in dma_list(st):
            for s in op: e(s)
    stamp()
    e("s_waitcnt vmcnt(16)")
    e("s_barrier")
    stamp()
    reads(0)
    for op in dma_list(3):
        for s in op: e(s)
    NS = 10
    pending = []
    for u in range(4*NS):
        stage, j = u >> 2, u & 3
        if u == 4*NS-1:
            e("s_waitcnt lgkmcnt(0)")
        elif j == 3:
            assert not pending
            nxt = stage + 1
            outstanding_after = min(NS-1, stage+3) - nxt
            e(f"s_waitcnt vmcnt({8*outstanding_after}) lgkmcnt(0)")
            e("s_barrier")
            stamp()
            reads(u+1)
            if stage + 4 < NS:
                pending = dma_list(stage+4)
        else:
            reads(u+1)
            e("s_waitcnt lgkmcnt(6)")
        take = {3: 3, 0: 3, 1: 2, 2: 0}[j]
        inter = pending[:take]; pending = pending[take:]
        mfmas(u, inter)
    stamp()
    e("s_cmp_ge_u32 s40, 1728")
    e("s_cbranch_scc1 L1_end")
    e("s_nop 7")
    e("s_nop 7")
    e("v_mov_b32 v26, 0xbfb8aa3b")
    e("v_mov_b32 v27, 0xbfb8aa3b")
    e("v_mov_b32 v28, 1.0")
    e("v_mov_b32 v29, 1.0")
    for fi in range(2):
        e(f"s_add_u32 s33, s32, {fi*4096}")
        for mi in range(2):
            a = ACC(fi, mi)
            dst = 32 + 8*(2*fi+mi)
            for pq in range(4):
                T = [(2, 4), (6, 8)]
                P = [2*pq, 2*pq+1]
                for (x, t), pr in zip(T, P):
                    e(f"v_cvt_pk_bf16_f32 v{t}, v{a+2*pr}, v{a+2*pr+1}")
                for (x, t), pr in zip(T, P):
                    e(f"v_and_b32 v{x+1}, 0xffff0000, v{t}")
                    e(f"v_lshlrev_b32 v{x}, 16, v{t}")
                for (x, t), pr in zip(T, P):
                    e(f"v_pk_mul_f32 v[{t}:{t+1}], v[{x}:{x+1}], v[26:27]")
                for (x, t), pr in zip(T, P):
                    e(f"v_exp_f32 v{t}, v{t}")
                    e(f"v_exp_f32 v{t+1}, v{t+1}")
                for (x, t), pr in zip(T, P):
                    e(f"v_pk_add_f32 v[{t}:{t+1}], v[{t}:{t+1}], v[28:29]")
                for (x, t), pr in zip(T, P):
                    e(f"v_rcp_f32 v{t}, v{t}")
                    e(f"v_rcp_f32 v{t+1}, v{t+1}")
                for (x, t), pr in zip(T, P):
                    e(f"v_pk_mul_f32 v[{x}:{x+1}], v[{x}:{x+1}], v[{t}:{t+1}]")
                for (x, t), pr in zip(T, P):
                    e(f"v_cvt_pk_bf16_f32 v{dst+pr}, v{x}, v{x+1}")
            for piece in range(2):
                e(f"buffer_store_dwordx4 {vr(dst+4*piece,4)}, v24, s[20:23], s33 offen offset:{mi*2048+piece*512}")
    stamp()
    e("s_waitcnt vmcnt(0)")
    stamp()
    dump_stamps(DIAG, 1)
    lab("L1_end")
    e("s_endpgm")
    lab("L1_helper")
    e("s_cmp_ge_u32 s2, 256")
    e("s_cbranch_scc1 L1_end")
    e("s_load_dwordx2 s[4:5], s[0:1], 16")
    e("s_load_dwordx2 s[8:9], s[0:1], 40")
    e("v_and_b32 v1, 63, v0")
    e("v_lshrrev_b32 v2, 6, v0")
    e("s_nop 0")
    e("v_readfirstlane_b32 s24, v2")
    e("s_sub_u32 s25, s2, 224")
    e("v_lshlrev_b32 v10, 4, v1")
    e("v_add_u32 v11, 4096, v10")
    e("v_lshrrev_b32 v2, 4, v1")
    e("v_and_b32 v3, 15, v1")
    e("v_lshrrev_b32 v4, 2, v3")
    e("v_and_b32 v3, 3, v3")
    e("v_lshrrev_b32 v5, 1, v2")
    e("v_lshlrev_b32 v5, 4, v5")
    e("v_and_b32 v6, 1, v2")
    e("v_lshlrev_b32 v6, 2, v6")
    e("v_add_u32 v5, v5, v6")
    e("v_add_u32 v5, v5, v4")
    e("v_mul_u32_u24 v5, 1280, v5")
    e("v_lshlrev_b32 v3, 3, v3")
    e("v_add_u32 v5, v5, v3")
    e("s_mul_i32 s26, s24, 320")
    e("v_add_u32 v16, s26, v5")
    e("s_mul_i32 s27, s24, 10240")
    e("s_waitcnt lgkmcnt(0)")
    e("s_mov_b32 s16, s4")
    e("s_and_b32 s17, s5, 0xffff")
    e("s_mov_b32 s18, 2211840")
    e("s_mov_b32 s19, 0x20000")
    e("s_add_u32 s20, s8, 0x800000")
    e("s_addc_u32 s21, s9, 0")
    e("s_and_b32 s21, s21, 0xffff")
    e("s_mov_b32 s22, 2211840")
    e("s_mov_b32 s23, 0x20000")
    lab("L1_hloop")
    e("s_mul_i32 s28, s25, 40960")
    e("s_add_u32 s28, s28, s27")
    for i in range(10):
        e(f"s_add_u32 m0, s27, {i*1024}")
        e(f"s_add_u32 s29, s28, {i*1024}")
        e(f"buffer_load_dwordx4 v10, s[16:19], s29 offen lds")
    e("s_waitcnt vmcnt(0)")
    e("s_barrier")
    for a in range(2):
        for nb in range(5):
            for t in range(2):
                e(f"ds_read_b64_tr_b16 {vr(32+4*(5*a+nb)+2*t,2)}, v16 offset:{t*10240+a*160+nb*32}")
    e("s_lshl_b32 s30, s24, 1")
    e("s_mul_i32 s30, s30, 54")
    e("s_add_u32 s30, s30, s25")
    e("s_mul_i32 s30, s30, 5120")
    e("s_add_u32 s31, s30, 276480")
    e("s_waitcnt lgkmcnt(0)")
    e("s_barrier")
    for a in range(2):
        for nb in range(5):
            if nb < 4:
                e(f"buffer_store_dwordx4 {vr(32+4*(5*a+nb),4)}, v10, s[20:23], s{30+a} offen offset:{nb*1024}")
            else:
                e(f"buffer_store_dwordx4 {vr(32+4*(5*a+nb),4)}, v11, s[20:23], s{30+a} offen")
    e("s_add_u32 s25, s25, 32")
    e("s_cmp_lt_u32 s25, 54")
    e("s_cbranch_scc1 L1_hloop")
    e("s_endpgm")

def gen_k2():
    D = D2
    NST = 14
    L.append(".globl ffn2_kernel")
    L.append(".p2align 8")
    L.append(".type ffn2_kernel,@function")
    lab("ffn2_kernel")
    e("s_cmp_ge_u32 s2, 256")
    e("s_cbranch_scc1 L2_end")
    stamp()
    e("s_load_dwordx2 s[6:7], s[0:1], 24")
    e("s_load_dwordx2 s[8:9], s[0:1], 40")
    e("v_and_b32 v1, 63, v0")
    e("v_lshrrev_b32 v2, 6, v0")
    e("s_nop 0")
    e("v_readfirstlane_b32 s24, v2")
    e("s_and_b32 s31, s2, 7")
    e("s_lshr_b32 s33, s2, 3")
    e("s_and_b32 s34, s33, 3")
    e("s_lshr_b32 s35, s33, 2")
    e("s_lshl_b32 s25, s31, 8")
    e("s_lshl_b32 s34, s34, 6")
    e("s_add_u32 s25, s25, s34")
    e("s_mul_i32 s26, s35, 80")
    e("s_mul_i32 s27, s24, 20480")
    e("s_lshl_b32 s36, s24, 12")
    e("s_mul_i32 s37, s24, 5120")
    e("v_lshlrev_b32 v10, 4, v1")
    e("v_add_u32 v11, 4096, v10")
    e("s_lshr_b32 s39, s25, 6")
    e("s_mul_i32 s39, s39, 221184")
    e("s_mul_i32 s40, s35, 276480")
    e("s_add_u32 s40, s40, 0x800000")
    e("s_waitcnt lgkmcnt(0)")
    e("s_add_u32 s12, s8, s39")
    e("s_addc_u32 s13, s9, 0")
    e("s_and_b32 s13, s13, 0xffff")
    e("s_mov_b32 s14, 221184")
    e("s_mov_b32 s15, 0x20000")
    e("s_add_u32 s16, s8, s40")
    e("s_addc_u32 s17, s9, 0")
    e("s_and_b32 s17, s17, 0xffff")
    e("s_mov_b32 s18, 276480")
    e("s_mov_b32 s19, 0x20000")

    RB = 32
    def A(s, mb): return RB + 36*s + 4*mb
    def W(s, nb): return RB + 36*s + 16 + 4*nb
    assert RB + 36*D <= 256
    def ACC(nb, mb): return f"a[{4*(4*nb+mb)}:{4*(4*nb+mb)+3}]"

    def loads(i):
        ops = []
        pre = [f"s_add_u32 s28, s36, {i*16384}", f"s_add_u32 s29, s37, {i*20480}"]
        for nb in range(5):
            if nb < 4:
                ops.append([f"buffer_load_dwordx4 {vr(W(i%D,nb),4)}, v10, s[16:19], s29 offen offset:{nb*1024}"])
            else:
                ops.append([f"buffer_load_dwordx4 {vr(W(i%D,nb),4)}, v11, s[16:19], s29 offen"])
        for mb in range(4):
            ops.append([f"buffer_load_dwordx4 {vr(A(i%D,mb),4)}, v10, s[12:15], s28 offen offset:{mb*1024}"])
        ops[0] = pre + ops[0]
        return ops

    for i in range(D-1):
        for op in loads(i):
            for s in op: e(s)
    stamp()
    e("s_mov_b32 s20, s6")
    e("s_and_b32 s21, s7, 0xffff")
    e("s_mov_b32 s22, 2621440")
    e("s_mov_b32 s23, 0x20000")
    e("v_lshrrev_b32 v2, 4, v1")
    e("v_and_b32 v3, 15, v1")
    e("v_mul_u32_u24 v3, 320, v3")
    e("v_lshlrev_b32 v4, 4, v2")
    e("v_add_u32 v3, v3, v4")
    e("v_add_u32 v17, s27, v3")
    e("v_lshrrev_b32 v2, 2, v0")
    e("v_and_b32 v3, 3, v0")
    e("v_mul_u32_u24 v4, 320, v2")
    e("v_mul_u32_u24 v5, 80, v3")
    e("v_add_u32 v18, v4, v5")
    e("v_add_u32 v2, s25, v2")
    e("v_mul_u32_u24 v2, 1280, v2")
    e("v_mul_u32_u24 v5, 40, v3")
    e("v_add_u32 v2, v2, v5")
    e("s_lshl_b32 s39, s26, 1")
    e("v_add_u32 v19, s39, v2")
    for i in range(NST):
        last_issued = min(i + D - 2, NST-1)
        e(f"s_waitcnt vmcnt({9*(last_issued-i)})")
        stamp()
        inter = loads(i+D-1) if i + D - 1 < NST else []
        k = 0
        for nb in range(5):
            for mb in range(4):
                cc = "0" if i == 0 else ACC(nb,mb)
                e(f"v_mfma_f32_16x16x32_bf16 {ACC(nb,mb)}, {vr(W(i%D,nb),4)}, {vr(A(i%D,mb),4)}, {cc}")
                if k % 2 == 1 and inter:
                    for s in inter.pop(0): e(s)
                k += 1
        assert not inter
    stamp()
    e("s_nop 7")
    e("s_nop 3")
    for nb in range(5):
        for mb in range(4):
            e(f"ds_write_b128 v17, {ACC(nb,mb)} offset:{mb*5120+nb*64}")
    e("s_waitcnt lgkmcnt(0)")
    e("s_barrier")
    e(f"v_add_u32 v20, {2*20480}, v18")
    for p in range(4):
        for j in range(5):
            e(f"ds_read_b128 {vr(32+20*p+4*j,4)}, v{18 if p < 2 else 20} offset:{(p&1)*20480+j*16}")
    e("s_waitcnt lgkmcnt(0)")
    for k in range(20):
        e(f"v_add_f32 v{32+k}, v{32+k}, v{52+k}")
        e(f"v_add_f32 v{72+k}, v{72+k}, v{92+k}")
    for k in range(20):
        e(f"v_add_f32 v{32+k}, v{32+k}, v{72+k}")
    for k in range(10):
        e(f"v_cvt_pk_bf16_f32 v{112+k}, v{32+2*k}, v{33+2*k}")
    for j in range(5):
        e(f"buffer_store_dwordx2 {vr(112+2*j,2)}, v19, s[20:23], 0 offen offset:{8*j}")
    stamp()
    e("s_waitcnt vmcnt(0)")
    stamp()
    dump_stamps(DIAG, 2)
    lab("L2_end")
    e("s_endpgm")

gen_k1()
gen_k2()

TAIL = """.section .rodata,"a"
.p2align 6
.amdhsa_kernel ffn1_kernel
  .amdhsa_next_free_vgpr 128
  .amdhsa_next_free_sgpr 100
  .amdhsa_accum_offset 128
  .amdhsa_group_segment_fixed_size 0
  .amdhsa_kernarg_size 48
  .amdhsa_user_sgpr_count 2
  .amdhsa_user_sgpr_kernarg_segment_ptr 1
  .amdhsa_system_sgpr_workgroup_id_x 1
.end_amdhsa_kernel
.p2align 6
.amdhsa_kernel ffn2_kernel
  .amdhsa_next_free_vgpr 336
  .amdhsa_next_free_sgpr 100
  .amdhsa_accum_offset 256
  .amdhsa_group_segment_fixed_size 0
  .amdhsa_kernarg_size 48
  .amdhsa_user_sgpr_count 2
  .amdhsa_user_sgpr_kernarg_segment_ptr 1
  .amdhsa_system_sgpr_workgroup_id_x 1
.end_amdhsa_kernel
"""
open(OUT, "w").write(HEADER + "\n".join(L) + "\n" + TAIL)
print("wrote", OUT, len(L), "lines")
```
